```python
import torch

def _softmax(x, axis=-1):
    return torch.softmax(x, dim=axis)

def _gelu(x):
    return torch.nn.functional.gelu(x, approximate='tanh')

def _silu(x):
    return torch.nn.functional.silu(x)

def _sigmoid(x):
    return torch.sigmoid(x)

def _layernorm(x, axis=-1, eps=1e-05):
    m = x.mean(dim=axis, keepdim=True)
    v = x.var(dim=axis, keepdim=True, unbiased=False)
    return (x - m) / torch.sqrt(v + eps)

def _scatter_add(tgt, idx, src, axis=0):
    return tgt.clone().index_add_(axis, idx, src)

def _segment_sum(src, seg, n):
    out = torch.zeros((n,) + src.shape[1:], dtype=src.dtype)
    return out.index_add_(0, seg, src)

def _pad(x, pw):
    flat = tuple((v for pair in reversed(pw) for v in pair))
    return torch.nn.functional.pad(x, flat)
kernel_name = 'standalone__ragged_sequences_varlen_flash_attn__ragged'

def setup_inputs():

    _w = lambda a: (lambda t: t.to(torch.bfloat16) if t.is_floating_point() else t)(torch.as_tensor(a))
    cu = torch.tensor([0, 267, 391, 734, 1145, 1486, 1586, 1793, 1920, 2261, 2733, 2860, 2978, 3276, 3550, 4058, 4249], dtype=torch.int64)
    T = int(cu[-1])
    Hq, Hkv, D = (16, 4, 128)
    assert Hq % Hkv == 0
    return {'q': _w((lambda *s: torch.randn(*s, dtype=torch.bfloat16) * 0.8)(T, Hq, D)), 'k': _w((lambda *s: torch.randn(*s, dtype=torch.bfloat16) * 0.8)(T, Hkv, D)), 'v': _w((lambda *s: torch.randn(*s, dtype=torch.bfloat16) * 0.05)(T, Hkv, D)), 'cu': _w(cu)}

def reference(q, k, v, cu):
    T, Hq, D = q.shape
    Hkv = k.shape[1]
    rep = Hq // Hkv
    scale = D ** (-0.5)
    outs = []
    for i in range(len(cu) - 1):
        s, e = (int(cu[i]), int(cu[i + 1]))
        L = e - s
        qi = q[s:e].clone()
        ki = (lambda x, n, axis: torch.repeat_interleave(x, n, dim=axis))(k[s:e], rep, axis=1)
        vi = (lambda x, n, axis: torch.repeat_interleave(x, n, dim=axis))(v[s:e], rep, axis=1)
        logits = torch.einsum('qhd,khd->hqk', qi, ki) * scale
        ar = torch.arange(L)
        neg = (lambda x, dt: x.to(dt))(ar[None, :] > ar[:, None], logits.dtype) * -1000000000.0
        p = _softmax(logits + neg[None, :, :], axis=-1)
        outs.append(torch.einsum('hqk,khd->qhd', p, vi))
    return torch.concatenate(outs, axis=0)
```

```python
import re

TRANS = ('v_exp_f32', 'v_log_f32', 'v_rcp_f32', 'v_rsq_f32', 'v_sqrt_f32', 'v_sin_f32', 'v_cos_f32')

def parse_reg(tok):
    tok = tok.strip()
    neg = tok.lstrip('-')
    if neg.startswith('abs(') and neg.endswith(')'):
        neg = neg[4:-1]
    if neg.startswith('|') and neg.endswith('|'):
        neg = neg[1:-1]
    m = re.fullmatch(r'([vsa])\[(\d+):(\d+)\]', neg)
    if m:
        return [(m.group(1), i) for i in range(int(m.group(2)), int(m.group(3)) + 1)]
    m = re.fullmatch(r'([vsa])(\d+)', neg)
    if m:
        return [(m.group(1), int(m.group(2)))]
    if neg == 'vcc':
        return [('vcc', 0)]
    if neg == 'exec':
        return [('exec', 0)]
    if neg == 'm0':
        return [('m0', 0)]
    return []

class Ins:
    __slots__ = ('text', 'op', 'ops', 'defs', 'uses', 'kind', 'passes', 'srcc', 'ab', 'target', 'label', 'ws', 'auto')
    def __init__(self, text):
        self.text = text
        self.label = None
        self.target = None
        self.auto = False
        self.ws = 1
        self.defs = []; self.uses = []; self.srcc = []; self.ab = []
        self.passes = 0
        t = text.split(';')[0].strip()
        if t.endswith(':'):
            self.label = t[:-1]; self.kind = 'label'; self.op = ''; self.ws = 0
            return
        if not t or t.startswith('.'):
            self.kind = 'dir'; self.op = ''; self.ws = 0
            return
        parts = t.split(None, 1)
        op = parts[0]
        op = re.sub(r'_e(32|64)$', '', op)
        self.op = op
        rest = parts[1] if len(parts) > 1 else ''
        ops = []; depth = 0; cur = ''
        for ch in rest:
            if ch in '[(': depth += 1
            if ch in '])': depth -= 1
            if ch == ',' and depth == 0:
                ops.append(cur.strip()); cur = ''
            else:
                cur += ch
        if cur.strip(): ops.append(cur.strip())
        mods = []
        if ops:
            sp = ops[-1].split()
            if len(sp) > 1 and not op.startswith('s_waitcnt'):
                ops[-1] = sp[0]; mods = sp[1:]
        self.ops = ops
        R = [parse_reg(o) for o in ops]
        flat = lambda l: [x for y in l for x in y]
        if op.startswith('v_mfma'):
            self.kind = 'mfma'
            self.passes = 8 if '32x32x16' in op else 4 if '16x16x32' in op else None
            assert self.passes, op
            self.defs = R[0]; self.ab = R[1] + R[2]; self.srcc = R[3]
            self.uses = self.ab + self.srcc
        elif op.startswith('v_cmp'):
            self.kind = 'valu'; self.defs = R[0]; self.uses = flat(R[1:])
        elif op in ('v_readfirstlane_b32', 'v_readlane_b32'):
            self.kind = 'valu'; self.defs = R[0]; self.uses = flat(R[1:])
        elif op.startswith('v_permlane'):
            self.kind = 'valu'; self.defs = R[0] + R[1]; self.uses = R[0] + R[1]
        elif op == 'v_cndmask_b32':
            self.kind = 'valu'; self.defs = R[0]; self.uses = flat(R[1:])
            if len(ops) == 3: self.uses = self.uses + [('vcc', 0)]
        elif op.startswith('v_fmac') or op.startswith('v_pk_fmac'):
            self.kind = 'valu'; self.defs = R[0]; self.uses = flat(R)
        elif op in ('v_add_co_u32', 'v_addc_co_u32', 'v_sub_co_u32'):
            self.kind = 'valu'; self.defs = R[0] + R[1]; self.uses = flat(R[2:])
        elif op.startswith('v_accvgpr'):
            self.kind = 'valu'; self.defs = R[0]; self.uses = flat(R[1:])
        elif op.startswith('v_'):
            self.kind = 'valu'; self.defs = R[0] if R else []; self.uses = flat(R[1:])
        elif op.startswith('ds_read'):
            self.kind = 'ds'; self.defs = R[0]; self.uses = flat(R[1:])
        elif op.startswith('ds_write'):
            self.kind = 'ds'; self.uses = flat(R)
        elif op.startswith('ds_'):
            self.kind = 'ds'; self.defs = R[0]; self.uses = flat(R[1:])
        elif op.startswith('buffer_load') or op.startswith('global_load'):
            self.kind = 'vmem'
            if 'lds' in mods or '_lds_' in op:
                self.uses = flat(R) + [('m0', 0)]; self.kind = 'dma'
            else:
                self.defs = R[0]; self.uses = flat(R[1:])
        elif op.startswith('buffer_store') or op.startswith('global_store'):
            self.kind = 'store'; self.uses = flat(R)
        elif op.startswith('buffer_atomic') or op.startswith('global_atomic'):
            self.kind = 'vmem'; self.uses = flat(R)
        elif op == 's_nop':
            self.kind = 'nop'; self.ws = int(ops[0], 0) + 1
        elif op in ('s_branch',) or op.startswith('s_cbranch'):
            self.kind = 'branch'; self.target = ops[0]
        elif op == 's_endpgm':
            self.kind = 'end'
        elif op.startswith('s_load') or op.startswith('s_memtime') or op.startswith('s_memrealtime'):
            self.kind = 'smem'; self.defs = R[0]; self.uses = flat(R[1:])
        elif op.startswith('s_cmp') or op in ('s_waitcnt', 's_barrier', 's_setprio', 's_sleep', 's_bitcmp0_b32', 's_bitcmp1_b32'):
            self.kind = 'salu'; self.uses = flat(R)
        elif op.startswith('s_and_saveexec') or op.startswith('s_or_saveexec'):
            self.kind = 'salu'; self.defs = R[0] + [('exec', 0)]; self.uses = flat(R[1:]) + [('exec', 0)]
        elif op.startswith('s_'):
            self.kind = 'salu'; self.defs = R[0] if R else []; self.uses = flat(R[1:])
            if op in ('s_addk_i32', 's_mulk_i32'): self.uses = self.uses + R[0]
        else:
            raise ValueError('unknown op: ' + text)

def need(prod, cons):
    n = 0
    pd = set(prod.defs); cu = set(cons.uses); cd = set(cons.defs)
    vg = lambda s: {x for x in s if x[0] in 'va' and x[0] != 'vcc'}
    sg = lambda s: {x for x in s if x[0] in ('s', 'vcc')}
    if prod.kind == 'valu':
        pv = vg(pd); ps = sg(pd)
        if cons.kind == 'mfma' and pv & cu: n = max(n, 2)
        if cons.kind == 'valu':
            if cons.op in ('v_readfirstlane_b32', 'v_readlane_b32') and pv & cu: n = max(n, 1)
            if cons.op.startswith('v_permlane') and pv & cu: n = max(n, 2)
            if ps & cu: n = max(n, 4 if cons.op in ('v_readlane_b32', 'v_writelane_b32') else 2)
            if prod.op in TRANS and cons.op not in TRANS and pv & cu: n = max(n, 1)
            if 'dpp' in cons.text and pv & cu: n = max(n, 2)
        if cons.kind == 'mfma' and prod.op in TRANS and pv & cu: n = max(n, 2)
        if cons.kind in ('vmem', 'dma', 'store') and ps & cu: n = max(n, 5)
        if cons.kind == 'salu' and ps & cu: n = max(n, 1)
        if cons.kind == 'smem' and ps & cu: n = max(n, 5)
    if prod.kind == 'mfma':
        big = prod.passes == 8
        if cons.kind == 'mfma':
            if pd & set(cons.ab): n = max(n, 12 if big else 8)
            if pd & set(cons.srcc):
                if not (cons.srcc == prod.defs and cons.passes == prod.passes):
                    n = max(n, 10 if big else 6)
            if pd & cd and not (cons.defs == prod.defs and cons.passes == prod.passes and cons.srcc == prod.defs):
                n = max(n, 12 if big else 8)
        elif cons.kind in ('valu', 'ds', 'vmem', 'store', 'dma'):
            if pd & (cu | cd): n = max(n, 12 if big else 8)
            if cons.kind == 'valu' and set(prod.srcc) & cd: n = max(n, 7 if big else 3)
            if cons.kind in ('ds', 'vmem') and set(prod.srcc) & cd: n = max(n, 7 if big else 3)
    if prod.kind == 'salu' and ('m0', 0) in pd and cons.kind == 'dma': n = max(n, 1)
    if prod.kind == 'salu' and ('exec', 0) in pd and cons.kind == 'valu' and 'dpp' in cons.text: n = max(n, 5)
    if prod.kind == 'store' and ('x4' in prod.op or 'x3' in prod.op):
        data = set(parse_reg(prod.ops[0])) if prod.op.startswith('buffer') else set(parse_reg(prod.ops[1]))
        if data & cd: n = max(n, 2)
    if prod.kind == 'ds' and prod.op in ('ds_write_b128', 'ds_write_b96') and cons.kind == 'valu':
        data = set(parse_reg(prod.ops[1]))
        if data & cd: n = max(n, 2)
    return n

class Asm:
    def __init__(self):
        self.L = []
    def __call__(self, text):
        for line in text.split('\n'):
            line = line.strip()
            if not line: continue
            if line.startswith(';'):
                i = Ins(''); i.text = line; self.L.append(i); continue
            self.L.append(Ins(line))
    def label(self, name):
        self.L.append(Ins(name + ':'))
    def fix_hazards(self, maxd=20, verbose=False):
        L = self.L
        inserted = 0
        i = 0
        while i < len(L):
            c = L[i]
            if c.kind in ('label', 'dir', 'nop', 'branch', 'end'):
                i += 1; continue
            short = self._worst(i, maxd)
            if short > 0:
                k = short
                new = []
                while k > 0:
                    m = min(k, 16)
                    n = Ins('s_nop %d' % (m - 1)); n.auto = True
                    new.append(n); k -= m
                L[i:i] = new
                inserted += short
                if verbose: print('  nop %d before: %s' % (short, c.text))
                i += len(new)
            i += 1
        return inserted
    def _worst(self, idx, maxd):
        L = self.L
        srcs = {}
        for k, x in enumerate(L):
            if x.kind == 'branch': srcs.setdefault(x.target, []).append(k)
        def preds(k):
            r = []
            if k > 0 and not (L[k - 1].kind == 'end' or L[k - 1].op == 's_branch'): r.append(k - 1)
            if L[k].kind == 'label': r += srcs.get(L[k].label, [])
            return r
        c = L[idx]
        worst = 0
        seen = {}
        stack = [(p, 0) for p in preds(idx)]
        while stack:
            k, d = stack.pop()
            if d >= maxd or seen.get(k, 99) <= d: continue
            seen[k] = d
            x = L[k]
            if x.kind not in ('label', 'dir'):
                n = need(x, c)
                if n - d > worst: worst = n - d
            for p in preds(k): stack.append((p, d + x.ws))
        return worst
    def text(self):
        out = []
        for x in self.L:
            if x.kind == 'label': out.append(x.text)
            else: out.append('    ' + x.text + ('   ; auto' if x.auto else ''))
        return '\n'.join(out) + '\n'
```

```python
CU = [0, 267, 391, 734, 1145, 1486, 1586, 1793, 1920, 2261, 2733, 2860, 2978, 3276, 3550, 4058, 4249]
T = CU[-1]
def pairs():
    out = []
    for i in range(len(CU) - 1):
        L = CU[i + 1] - CU[i]
        n = (L + 31) // 32
        for g in range(4):
            out.append((i, g, L, n))
    return out
def assign_xcd(weight=lambda n: n * (n + 1) // 2, nx=8):
    ps = sorted(pairs(), key=lambda p: -weight(p[3]))
    bins = [[] for _ in range(nx)]; load = [0] * nx
    for p in ps:
        k = min(range(nx), key=lambda j: (load[j], len(bins[j])))
        bins[k].append(p); load[k] += weight(p[3])
    return bins, load
def items_of(bin_):
    its = []
    for (i, g, L, n) in bin_:
        for b in range(n):
            its.append(dict(seq=i, g=g, blk=b, qrow0=CU[i] + 32 * b, ntiles=b + 1, nvalid=min(32, L - 32 * b)))
    return its
def pack(it):
    return it['qrow0'] | (it['g'] << 13) | (it['ntiles'] << 16) | (it['nvalid'] << 24)
def table_v1(order='desc'):
    bins, load = assign_xcd()
    lists = []
    for b in bins:
        its = items_of(b)
        its.sort(key=lambda x: -x['ntiles'])
        lists.append(its)
    m = max(len(l) for l in lists)
    tab = []
    for k in range(m):
        for x in range(8):
            tab.append(pack(lists[x][k]) if k < len(lists[x]) else 0)
    return tab, lists, load
if __name__ == '__main__':
    tab, lists, load = table_v1()
    print(len(tab), load, [len(l) for l in lists])
```

```python
import sys, os
sys.path.insert(0, os.path.dirname(os.path.abspath(__file__)))
from asmlib import Asm
import sched

NAME = 'standalone__ragged_sequences_varlen_flash_attn__ragged'
T = sched.T
QBYTES = T * 16 * 128 * 2
KBYTES = T * 4 * 128 * 2
KPAD = 1056; VPAD = 1088
KSZ = 8 * KPAD; VSZ = 8 * VPAD; SLOT = KSZ + VSZ
NSLOT = 3
C = 1.4426950408889634 / (128 ** 0.5)
import struct
def fbits(x): return struct.unpack('<I', struct.pack('<f', x))[0]

HEADER = open(os.path.join(os.path.dirname(os.path.abspath(__file__)), 'header.txt')).read()

def gen(opts=None):
    opts = opts or {}
    tab, lists, load = sched.table_v1()
    NWG = len(tab)
    a = Asm()
    O = 0
    Q = 64
    S = 96
    P = 112
    F = 120
    vTID = 152; vKRD = 153; vVRD = 154; vKDMA = 155; vVDMA = 156
    vM = 157; vL = 158; vT0 = 159; vT1 = 160; vALPHA = 161; vNMC = 162; vMASK = 163; vOOFF = 164; vT2 = 165
    NV = 168
    sQ = 4; sK = 8; sV = 12; sO = 16
    sE = 20; sW = 21; sN = 22; sT = 23; sKOFF = 24; sVOFF = 25; sM0K = 26; sM0V = 27; sSLOT = 28; sC = 29
    sQOFF = 30; sTMP = 31; sTMP2 = 32; sG = 33; sNV = 34; sROW = 35; sDSLOT = 36; sRDELTA = 37; sTAB = 38
    sEX = 40
    def vr(b, n): return 'v[%d:%d]' % (b, b + n - 1)

    a('s_cmp_ge_u32 s2, %d' % NWG)
    a('s_cbranch_scc1 L_end')
    a('s_getpc_b64 s[%d:%d]' % (sTAB, sTAB + 1))
    a.label('L_pc')
    a('s_add_u32 s%d, s%d, L_table-L_pc' % (sTAB, sTAB))
    a('s_addc_u32 s%d, s%d, 0' % (sTAB + 1, sTAB + 1))
    a('s_lshl_b32 s%d, s2, 2' % sTMP)
    a('s_load_dword s%d, s[%d:%d], s%d' % (sE, sTAB, sTAB + 1, sTMP))
    a('s_load_dwordx2 s[%d:%d], s[0:1], 0' % (sQ, sQ + 1))
    a('s_load_dwordx2 s[%d:%d], s[0:1], 8' % (sK, sK + 1))
    a('s_load_dwordx2 s[%d:%d], s[0:1], 16' % (sV, sV + 1))
    a('s_load_dwordx2 s[%d:%d], s[0:1], 32' % (sO, sO + 1))
    for r, sz in ((sQ, QBYTES), (sK, KBYTES), (sV, KBYTES), (sO, QBYTES)):
        a('s_mov_b32 s%d, 0x%x' % (r + 2, sz))
        a('s_mov_b32 s%d, 0x20000' % (r + 3))
    a('s_mov_b32 s%d, 0x%x' % (sC, fbits(C)))
    a('v_lshrrev_b32 v%d, 6, v0' % vT0)
    a('v_and_b32 v%d, 63, v0' % vTID)
    a('v_readfirstlane_b32 s%d, v%d' % (sW, vT0))
    lane = 'v%d' % vTID
    a('v_bfe_u32 v%d, %s, 2, 3' % (vT0, lane))
    a('v_lshlrev_b32 v%d, 12, v%d' % (vOOFF, vT0))
    a('v_and_b32 v%d, 3, %s' % (vT1, lane))
    a('v_lshl_add_u32 v%d, v%d, 8, v%d' % (vOOFF, vT1, vOOFF))
    a('v_lshrrev_b32 v%d, 5, %s' % (vT2, lane))
    a('v_lshl_add_u32 v%d, v%d, 4, v%d' % (vOOFF, vT2, vOOFF))
    a('v_lshlrev_b32 v%d, 2, v%d' % (vT1, vT2))
    a('v_sub_u32 v%d, v%d, v%d' % (vMASK, vT0, vT1))
    a('v_and_b32 v%d, 7, %s' % (vT0, lane))
    a('v_mul_u32_u24 v%d, %d, v%d' % (vKRD, KPAD, vT0))
    a('v_bfe_u32 v%d, %s, 3, 2' % (vT0, lane))
    a('v_lshl_add_u32 v%d, v%d, 8, v%d' % (vKRD, vT0, vKRD))
    a('v_and_b32 v%d, 1, v%d' % (vT0, vT0))
    a('v_xor_b32 v%d, v%d, v%d' % (vT0, vT0, vT2))
    a('v_lshl_add_u32 v%d, v%d, 4, v%d' % (vKRD, vT0, vKRD))
    a('v_bfe_u32 v%d, %s, 2, 2' % (vT0, lane))
    a('v_mul_u32_u24 v%d, %d, v%d' % (vVRD, VPAD, vT0))
    a('v_lshl_add_u32 v%d, v%d, 8, v%d' % (vVRD, vT2, vVRD))
    a('v_bfe_u32 v%d, %s, 4, 1' % (vT0, lane))
    a('v_lshl_add_u32 v%d, v%d, 5, v%d' % (vVRD, vT0, vVRD))
    a('v_and_b32 v%d, 3, %s' % (vT0, lane))
    a('v_lshl_add_u32 v%d, v%d, 3, v%d' % (vVRD, vT0, vVRD))
    a('v_add_u32 v%d, %d, v%d' % (vVRD, KSZ, vVRD))
    a('v_lshrrev_b32 v%d, 4, %s' % (vT0, lane))
    a('v_and_b32 v%d, 15, %s' % (vT1, lane))
    a('v_lshlrev_b32 v%d, 12, v%d' % (vVDMA, vT0))
    a('v_lshl_add_u32 v%d, v%d, 4, v%d' % (vVDMA, vT1, vVDMA))
    a('v_and_b32 v%d, 1, v%d' % (vT2, vT0))
    a('v_xor_b32 v%d, v%d, v%d' % (vT1, vT1, vT2))
    a('v_lshlrev_b32 v%d, 13, v%d' % (vKDMA, vT0))
    a('v_lshl_add_u32 v%d, v%d, 4, v%d' % (vKDMA, vT1, vKDMA))
    a('s_waitcnt lgkmcnt(0)')
    a('s_and_b32 s%d, s%d, 0x1fff' % (sROW, sE))
    a('s_bfe_u32 s%d, s%d, 0x2000d' % (sG, sE))
    a('s_bfe_u32 s%d, s%d, 0x50010' % (sN, sE))
    a('s_bfe_u32 s%d, s%d, 0x60018' % (sNV, sE))
    a('s_cmp_eq_u32 s%d, 0' % sN)
    a('s_cbranch_scc1 L_end')
    a('s_lshl_b32 s%d, s%d, 3' % (sTMP, sW))
    a('s_add_u32 s%d, s%d, s%d' % (sTMP, sTMP, sROW))
    a('s_lshl_b32 s%d, s%d, 12' % (sQOFF, sTMP))
    a('s_lshl_b32 s%d, s%d, 10' % (sTMP, sG))
    a('s_add_u32 s%d, s%d, s%d' % (sQOFF, sQOFF, sTMP))
    for s in range(8):
        a('buffer_load_dwordx4 %s, v%d, s[%d:%d], s%d offen offset:%d' % (vr(Q + 4 * s, 4), vOOFF, sQ, sQ + 3, sQOFF, 32 * s))
    a('s_lshl_b32 s%d, s%d, 8' % (sTMP2, sG))
    a('s_lshl_b32 s%d, s%d, 1' % (sTMP, sW))
    a('s_add_u32 s%d, s%d, s%d' % (sKOFF, sTMP, sROW))
    a('s_lshl_b32 s%d, s%d, 10' % (sKOFF, sKOFF))
    a('s_add_u32 s%d, s%d, s%d' % (sKOFF, sKOFF, sTMP2))
    a('s_and_b32 s%d, s%d, 3' % (sVOFF, sTMP))
    a('s_add_u32 s%d, s%d, s%d' % (sVOFF, sVOFF, sROW))
    a('s_lshr_b32 s%d, s%d, 1' % (sTMP, sW))
    a('s_lshl_b32 s%d, s%d, 4' % (sTMP, sTMP))
    a('s_add_u32 s%d, s%d, s%d' % (sVOFF, sVOFF, sTMP))
    a('s_lshl_b32 s%d, s%d, 10' % (sVOFF, sVOFF))
    a('s_add_u32 s%d, s%d, s%d' % (sVOFF, sVOFF, sTMP2))
    a('s_mul_i32 s%d, s%d, %d' % (sM0K, sW, 2 * KPAD))
    a('s_mul_i32 s%d, s%d, %d' % (sM0V, sW, 2 * VPAD))
    a('s_add_u32 s%d, s%d, %d' % (sM0V, sM0V, KSZ))
    a('s_mov_b32 s%d, 0' % sDSLOT)
    def dma():
        a('s_add_u32 m0, s%d, s%d' % (sM0K, sDSLOT))
        a('buffer_load_dwordx4 v%d, s[%d:%d], s%d offen lds' % (vKDMA, sK, sK + 3, sKOFF))
        a('s_add_u32 m0, m0, %d' % (KPAD - 1024))
        a('buffer_load_dwordx4 v%d, s[%d:%d], s%d offen offset:1024 lds' % (vKDMA, sK, sK + 3, sKOFF))
        a('s_add_u32 m0, s%d, s%d' % (sM0V, sDSLOT))
        a('buffer_load_dwordx4 v%d, s[%d:%d], s%d offen lds' % (vVDMA, sV, sV + 3, sVOFF))
        a('s_add_u32 m0, m0, %d' % (VPAD - 1024))
        a('buffer_load_dwordx4 v%d, s[%d:%d], s%d offen offset:1024 lds' % (vVDMA, sV, sV + 3, sVOFF))
        a('s_sub_u32 s%d, s%d, 0x8000' % (sKOFF, sKOFF))
        a('s_sub_u32 s%d, s%d, 0x8000' % (sVOFF, sVOFF))
        a('s_add_u32 s%d, s%d, %d' % (sDSLOT, sDSLOT, SLOT))
        a('s_cmp_eq_u32 s%d, %d' % (sDSLOT, NSLOT * SLOT))
        a('s_cselect_b32 s%d, 0, s%d' % (sDSLOT, sDSLOT))
    dma()
    a('s_cmp_lt_u32 s%d, 2' % sN)
    a('s_cbranch_scc1 L_no2')
    dma()
    a.label('L_no2')
    a('s_lshl_b32 s%d, s%d, 3' % (sTMP, sW))
    a('v_add_u32 v%d, s%d, v%d' % (vMASK, sTMP, vMASK))
    for r in range(64): a('v_mov_b32 v%d, 0' % (O + r))
    a('v_mov_b32 v%d, 0xff800000' % vM)
    a('v_mov_b32 v%d, 0' % vL)
    a('s_mov_b32 s%d, 0' % sT)
    a('s_mov_b32 s%d, 0' % sSLOT)
    a.label('L_loop')
    a('s_add_u32 s%d, s%d, 1' % (sTMP, sT))
    a('s_cmp_lt_u32 s%d, s%d' % (sTMP, sN))
    a('s_cbranch_scc1 L_w4')
    a('s_waitcnt vmcnt(0)')
    a('s_branch L_w0')
    a.label('L_w4')
    a('s_waitcnt vmcnt(4)')
    a.label('L_w0')
    a('s_barrier')
    a('s_add_u32 s%d, s%d, 2' % (sTMP, sT))
    a('s_cmp_lt_u32 s%d, s%d' % (sTMP, sN))
    a('s_cbranch_scc0 L_nodma')
    dma()
    a.label('L_nodma')
    for s in range(8):
        a('ds_read_b128 %s, v%d offset:%d' % (vr(F + 4 * s, 4), vKRD, 32 * s))
    for s in range(8):
        a('s_waitcnt lgkmcnt(%d)' % (7 - s))
        a('v_mfma_f32_32x32x16_bf16 %s, %s, %s, %s' % (vr(S, 16), vr(F + 4 * s, 4), vr(Q + 4 * s, 4), '0' if s == 0 else vr(S, 16)))
    for s in range(2):
        for b in range(4):
            for jj in range(2):
                k = (s * 4 + b) * 4 + jj * 2
                a('ds_read_b64_tr_b16 %s, v%d offset:%d' % (vr(F + k, 2), vVRD, s * 4 * VPAD + jj * 512 + b * 64))
    a('s_cmp_lg_u32 s%d, 0' % sT)
    a('s_cbranch_scc1 L_nomask')
    a('v_mov_b32 v%d, 0xff800000' % vT0)
    for r in range(16):
        kc = (r & 3) + 8 * (r >> 2)
        a('v_cmp_gt_i32 vcc, %d, v%d' % (kc, vMASK))
        a('v_cndmask_b32 v%d, v%d, v%d, vcc' % (S + r, S + r, vT0))
    a.label('L_nomask')
    a('v_max3_f32 v%d, v%d, v%d, v%d' % (vT0, S, S + 1, S + 2))
    for r in range(3, 15, 2):
        a('v_max3_f32 v%d, v%d, v%d, v%d' % (vT0, vT0, S + r, S + r + 1))
    a('v_max3_f32 v%d, v%d, v%d, v%d' % (vT0, vT0, S + 15, vM))
    a('v_mov_b32 v%d, v%d' % (vT1, vT0))
    a('v_permlane32_swap_b32 v%d, v%d' % (vT1, vT0))
    a('v_max_f32 v%d, v%d, v%d' % (vT0, vT0, vT1))
    a('v_sub_f32 v%d, v%d, v%d' % (vT1, vM, vT0))
    a('v_mul_f32 v%d, s%d, v%d' % (vT1, sC, vT1))
    a('v_exp_f32 v%d, v%d' % (vALPHA, vT1))
    a('v_mov_b32 v%d, v%d' % (vM, vT0))
    a('v_mul_f32 v%d, s%d, v%d' % (vNMC, sC, vT0))
    for r in range(16):
        a('v_fma_f32 v%d, v%d, s%d, -v%d' % (S + r, S + r, sC, vNMC))
    for r in range(16):
        a('v_exp_f32 v%d, v%d' % (S + r, S + r))
    for r in range(64):
        a('v_mul_f32 v%d, v%d, v%d' % (O + r, vALPHA, O + r))
    a('v_mul_f32 v%d, v%d, v%d' % (vL, vALPHA, vL))
    for r in range(16):
        a('v_add_f32 v%d, v%d, v%d' % (vL, vL, S + r))
    for r in range(8):
        a('v_cvt_pk_bf16_f32 v%d, v%d, v%d' % (P + r, S + 2 * r, S + 2 * r + 1))
    a('s_waitcnt lgkmcnt(0)')
    for s in range(2):
        for b in range(4):
            k = (s * 4 + b) * 4
            a('v_mfma_f32_32x32x16_bf16 %s, %s, %s, %s' % (vr(O + 16 * b, 16), vr(F + k, 4), vr(P + 4 * s, 4), vr(O + 16 * b, 16)))
    a('s_add_u32 s%d, s%d, %d' % (sSLOT, sSLOT, SLOT))
    a('s_cmp_eq_u32 s%d, %d' % (sSLOT, NSLOT * SLOT))
    a('s_mov_b32 s%d, %d' % (sRDELTA, SLOT))
    a('s_cselect_b32 s%d, 0x%x, s%d' % (sRDELTA, (-(NSLOT - 1) * SLOT) & 0xffffffff, sRDELTA))
    a('s_cselect_b32 s%d, 0, s%d' % (sSLOT, sSLOT))
    a('v_add_u32 v%d, s%d, v%d' % (vKRD, sRDELTA, vKRD))
    a('v_add_u32 v%d, s%d, v%d' % (vVRD, sRDELTA, vVRD))
    a('s_add_u32 s%d, s%d, 1' % (sT, sT))
    a('s_cmp_lt_u32 s%d, s%d' % (sT, sN))
    a('s_cbranch_scc1 L_loop')
    a('v_mov_b32 v%d, v%d' % (vT1, vL))
    a('v_permlane32_swap_b32 v%d, v%d' % (vT1, vL))
    a('v_add_f32 v%d, v%d, v%d' % (vL, vL, vT1))
    a('v_rcp_f32 v%d, v%d' % (vL, vL))
    a('v_bfe_u32 v%d, v%d, 2, 3' % (vT0, vTID))
    a('s_lshl_b32 s%d, s%d, 3' % (sTMP, sW))
    a('v_add_u32 v%d, s%d, v%d' % (vT0, sTMP, vT0))
    a('v_cmp_gt_u32 vcc, s%d, v%d' % (sNV, vT0))
    for r in range(64):
        a('v_mul_f32 v%d, v%d, v%d' % (O + r, vL, O + r))
    PK = S
    a('s_and_saveexec_b64 s[%d:%d], vcc' % (sEX, sEX + 1))
    a('s_cbranch_execz L_end')
    a('s_mov_b64 exec, s[%d:%d]' % (sEX, sEX + 1))
    for b in range(4):
        for tp in range(2):
            base = Q + (b * 2 + tp) * 4
            o0 = O + 16 * b + 8 * tp
            a('v_cvt_pk_bf16_f32 v%d, v%d, v%d' % (base + 0, o0 + 0, o0 + 1))
            a('v_cvt_pk_bf16_f32 v%d, v%d, v%d' % (base + 1, o0 + 2, o0 + 3))
            a('v_cvt_pk_bf16_f32 v%d, v%d, v%d' % (base + 2, o0 + 4, o0 + 5))
            a('v_cvt_pk_bf16_f32 v%d, v%d, v%d' % (base + 3, o0 + 6, o0 + 7))
    for b in range(4):
        for tp in range(2):
            base = Q + (b * 2 + tp) * 4
            a('v_permlane32_swap_b32 v%d, v%d' % (base + 0, base + 2))
            a('v_permlane32_swap_b32 v%d, v%d' % (base + 1, base + 3))
    a('s_and_b64 exec, exec, vcc')
    for b in range(4):
        for tp in range(2):
            base = Q + (b * 2 + tp) * 4
            a('buffer_store_dwordx4 %s, v%d, s[%d:%d], s%d offen offset:%d' % (vr(base, 4), vOOFF, sO, sO + 3, sQOFF, 64 * b + 32 * tp))
    a.label('L_end')
    a('s_endpgm')
    n = a.fix_hazards(verbose=opts.get('verbose', False))
    body = a.text()
    tabtxt = '.p2align 6\n.type L_table,@object\nL_table:\n' + ''.join('.long 0x%08x\n' % x for x in tab) + '.size L_table, %d\n' % (4 * len(tab))
    lds = NSLOT * SLOT
    hdr = HEADER.replace('@LAUNCH@', '; @launch grid=(%d,1,1) block=(256,1,1) lds=%d' % (NWG, lds))
    out = hdr + '.amdgcn_target "amdgcn-amd-amdhsa--gfx950"\n.text\n.globl %s_kernel\n.p2align 8\n.type %s_kernel,@function\n%s_kernel:\n' % (NAME, NAME, NAME)
    out += body + tabtxt
    out += '''.section .rodata,"a"
.p2align 6
.amdhsa_kernel %s_kernel
  .amdhsa_next_free_vgpr %d
  .amdhsa_next_free_sgpr 64
  .amdhsa_accum_offset %d
  .amdhsa_group_segment_fixed_size 0
  .amdhsa_kernarg_size 56
  .amdhsa_user_sgpr_count 2
  .amdhsa_user_sgpr_kernarg_segment_ptr 1
  .amdhsa_system_sgpr_workgroup_id_x 1
.end_amdhsa_kernel
''' % (NAME, NV, NV)
    return out

if __name__ == '__main__':
    out = gen({'verbose': True})
    path = sys.argv[1] if len(sys.argv) > 1 else 'cdna_kernels/%s.s' % NAME
    open(path, 'w').write(out)
    print('wrote', path, len(out))
```

```python
import sys, os
sys.path.insert(0, os.path.dirname(os.path.abspath(__file__)))
from asmlib import Asm
import sched

NAME = 'standalone__ragged_sequences_varlen_flash_attn__ragged'
T = sched.T
QBYTES = T * 16 * 128 * 2
KBYTES = T * 4 * 128 * 2
KPAD = 1056; VPAD = 1088
KSZ = 8 * KPAD; VSZ = 8 * VPAD; SLOT = KSZ + VSZ
NSLOT = 3
C = 1.4426950408889634 / (128 ** 0.5)
import struct
def fbits(x): return struct.unpack('<I', struct.pack('<f', x))[0]

HEADER = open(os.path.join(os.path.dirname(os.path.abspath(__file__)), 'header.txt')).read()

def gen(opts=None):
    opts = opts or {}
    tab, lists, load = sched.table_v1()
    NWG = len(tab)
    a = Asm()
    O = 0
    Q = 64
    S = 96
    P = 112
    F = 120
    vTID = 152; vKRD = 153; vVRD = 154; vKDMA = 155; vVDMA = 156
    vM = 157; vL = 158; vT0 = 159; vT1 = 160; vALPHA = 161; vNMC = 162; vMASK = 163; vOOFF = 164; vT2 = 165
    NV = 168
    sQ = 4; sK = 8; sV = 12; sO = 16
    sE = 20; sW = 21; sN = 22; sT = 23; sKOFF = 24; sVOFF = 25; sM0K = 26; sM0V = 27; sSLOT = 28; sC = 29
    sQOFF = 30; sTMP = 31; sTMP2 = 32; sG = 33; sNV = 34; sROW = 35; sDSLOT = 36; sRDELTA = 37; sTAB = 38
    sEX = 40
    def vr(b, n): return 'v[%d:%d]' % (b, b + n - 1)

    STAMP = opts.get('stamp', False)
    STF = ' sc1' if opts.get('sc1') else ' nt' if opts.get('nt') else ' sc0 sc1' if opts.get('sc01') else ' sc1 nt' if opts.get('sc1nt') else ''
    sST = 44
    def stamp(k, real=False):
        if STAMP:
            a('s_memrealtime s[%d:%d]' % (sST + 2 * k, sST + 2 * k + 1) if real else 's_memtime s[%d:%d]' % (sST + 2 * k, sST + 2 * k + 1))
    a('s_cmp_ge_u32 s2, %d' % NWG)
    a('s_cbranch_scc1 L_end')
    stamp(0, True); stamp(1)
    SPIN = opts.get('spin', False)
    if SPIN:
        a('s_memrealtime s[70:71]')
    a('s_getpc_b64 s[%d:%d]' % (sTAB, sTAB + 1))
    a.label('L_pc')
    a('s_add_u32 s%d, s%d, L_table-L_pc' % (sTAB, sTAB))
    a('s_addc_u32 s%d, s%d, 0' % (sTAB + 1, sTAB + 1))
    a('s_lshl_b32 s%d, s2, 2' % sTMP)
    a('s_load_dword s%d, s[%d:%d], s%d' % (sE, sTAB, sTAB + 1, sTMP))
    a('s_load_dwordx2 s[%d:%d], s[0:1], 0' % (sQ, sQ + 1))
    a('s_load_dwordx2 s[%d:%d], s[0:1], 8' % (sK, sK + 1))
    a('s_load_dwordx2 s[%d:%d], s[0:1], 16' % (sV, sV + 1))
    a('s_load_dwordx2 s[%d:%d], s[0:1], 32' % (sO, sO + 1))
    for r, sz in ((sQ, QBYTES), (sK, KBYTES), (sV, KBYTES), (sO, QBYTES)):
        a('s_mov_b32 s%d, 0x%x' % (r + 2, sz))
        a('s_mov_b32 s%d, 0x20000' % (r + 3))
    a('s_mov_b32 s%d, 0x%x' % (sC, fbits(C)))
    a('v_lshrrev_b32 v%d, 6, v0' % vT0)
    a('v_and_b32 v%d, 63, v0' % vTID)
    a('v_readfirstlane_b32 s%d, v%d' % (sW, vT0))
    lane = 'v%d' % vTID
    a('v_bfe_u32 v%d, %s, 2, 3' % (vT0, lane))
    a('v_lshlrev_b32 v%d, 12, v%d' % (vOOFF, vT0))
    a('v_and_b32 v%d, 3, %s' % (vT1, lane))
    a('v_lshl_add_u32 v%d, v%d, 8, v%d' % (vOOFF, vT1, vOOFF))
    a('v_lshrrev_b32 v%d, 5, %s' % (vT2, lane))
    a('v_lshl_add_u32 v%d, v%d, 4, v%d' % (vOOFF, vT2, vOOFF))
    a('v_lshlrev_b32 v%d, 2, v%d' % (vT1, vT2))
    a('v_sub_u32 v%d, v%d, v%d' % (vMASK, vT0, vT1))
    a('v_and_b32 v%d, 7, %s' % (vT0, lane))
    a('v_mul_u32_u24 v%d, %d, v%d' % (vKRD, KPAD, vT0))
    a('v_bfe_u32 v%d, %s, 3, 2' % (vT0, lane))
    a('v_lshl_add_u32 v%d, v%d, 8, v%d' % (vKRD, vT0, vKRD))
    a('v_and_b32 v%d, 1, v%d' % (vT0, vT0))
    a('v_xor_b32 v%d, v%d, v%d' % (vT0, vT0, vT2))
    a('v_lshl_add_u32 v%d, v%d, 4, v%d' % (vKRD, vT0, vKRD))
    a('v_bfe_u32 v%d, %s, 2, 2' % (vT0, lane))
    a('v_mul_u32_u24 v%d, %d, v%d' % (vVRD, VPAD, vT0))
    a('v_lshl_add_u32 v%d, v%d, 8, v%d' % (vVRD, vT2, vVRD))
    a('v_bfe_u32 v%d, %s, 4, 1' % (vT0, lane))
    a('v_lshl_add_u32 v%d, v%d, 5, v%d' % (vVRD, vT0, vVRD))
    a('v_and_b32 v%d, 3, %s' % (vT0, lane))
    a('v_lshl_add_u32 v%d, v%d, 3, v%d' % (vVRD, vT0, vVRD))
    a('v_add_u32 v%d, %d, v%d' % (vVRD, KSZ, vVRD))
    a('v_lshrrev_b32 v%d, 4, %s' % (vT0, lane))
    a('v_and_b32 v%d, 15, %s' % (vT1, lane))
    a('v_lshlrev_b32 v%d, 12, v%d' % (vVDMA, vT0))
    a('v_lshl_add_u32 v%d, v%d, 4, v%d' % (vVDMA, vT1, vVDMA))
    a('v_and_b32 v%d, 1, v%d' % (vT2, vT0))
    a('v_xor_b32 v%d, v%d, v%d' % (vT1, vT1, vT2))
    a('v_lshlrev_b32 v%d, 13, v%d' % (vKDMA, vT0))
    a('v_lshl_add_u32 v%d, v%d, 4, v%d' % (vKDMA, vT1, vKDMA))
    a('s_waitcnt lgkmcnt(0)')
    a('s_and_b32 s%d, s%d, 0x1fff' % (sROW, sE))
    a('s_bfe_u32 s%d, s%d, 0x2000d' % (sG, sE))
    a('s_bfe_u32 s%d, s%d, 0x50010' % (sN, sE))
    a('s_bfe_u32 s%d, s%d, 0x60018' % (sNV, sE))
    a('s_cmp_eq_u32 s%d, 0' % sN)
    a('s_cbranch_scc1 L_end')
    a('s_lshl_b32 s%d, s%d, 3' % (sTMP, sW))
    a('s_add_u32 s%d, s%d, s%d' % (sTMP, sTMP, sROW))
    a('s_lshl_b32 s%d, s%d, 12' % (sQOFF, sTMP))
    a('s_lshl_b32 s%d, s%d, 10' % (sTMP, sG))
    a('s_add_u32 s%d, s%d, s%d' % (sQOFF, sQOFF, sTMP))
    for s in range(8):
        a('buffer_load_dwordx4 %s, v%d, s[%d:%d], s%d offen offset:%d' % (vr(Q + 4 * s, 4), vOOFF, sQ, sQ + 3, sQOFF, 32 * s))
    a('s_lshl_b32 s%d, s%d, 8' % (sTMP2, sG))
    a('s_lshl_b32 s%d, s%d, 1' % (sTMP, sW))
    a('s_add_u32 s%d, s%d, s%d' % (sKOFF, sTMP, sROW))
    a('s_lshl_b32 s%d, s%d, 10' % (sKOFF, sKOFF))
    a('s_add_u32 s%d, s%d, s%d' % (sKOFF, sKOFF, sTMP2))
    a('s_and_b32 s%d, s%d, 3' % (sVOFF, sTMP))
    a('s_add_u32 s%d, s%d, s%d' % (sVOFF, sVOFF, sROW))
    a('s_lshr_b32 s%d, s%d, 1' % (sTMP, sW))
    a('s_lshl_b32 s%d, s%d, 4' % (sTMP, sTMP))
    a('s_add_u32 s%d, s%d, s%d' % (sVOFF, sVOFF, sTMP))
    a('s_lshl_b32 s%d, s%d, 10' % (sVOFF, sVOFF))
    a('s_add_u32 s%d, s%d, s%d' % (sVOFF, sVOFF, sTMP2))
    a('s_mul_i32 s%d, s%d, %d' % (sM0K, sW, 2 * KPAD))
    a('s_mul_i32 s%d, s%d, %d' % (sM0V, sW, 2 * VPAD))
    a('s_add_u32 s%d, s%d, %d' % (sM0V, sM0V, KSZ))
    a('s_mov_b32 s%d, 0' % sDSLOT)
    def dma():
        a('s_add_u32 m0, s%d, s%d' % (sM0K, sDSLOT))
        a('buffer_load_dwordx4 v%d, s[%d:%d], s%d offen lds' % (vKDMA, sK, sK + 3, sKOFF))
        a('s_add_u32 m0, m0, %d' % (KPAD - 1024))
        a('buffer_load_dwordx4 v%d, s[%d:%d], s%d offen offset:1024 lds' % (vKDMA, sK, sK + 3, sKOFF))
        a('s_add_u32 m0, s%d, s%d' % (sM0V, sDSLOT))
        a('buffer_load_dwordx4 v%d, s[%d:%d], s%d offen lds' % (vVDMA, sV, sV + 3, sVOFF))
        a('s_add_u32 m0, m0, %d' % (VPAD - 1024))
        a('buffer_load_dwordx4 v%d, s[%d:%d], s%d offen offset:1024 lds' % (vVDMA, sV, sV + 3, sVOFF))
        a('s_sub_u32 s%d, s%d, 0x8000' % (sKOFF, sKOFF))
        a('s_sub_u32 s%d, s%d, 0x8000' % (sVOFF, sVOFF))
        a('s_add_u32 s%d, s%d, %d' % (sDSLOT, sDSLOT, SLOT))
        a('s_cmp_eq_u32 s%d, %d' % (sDSLOT, NSLOT * SLOT))
        a('s_cselect_b32 s%d, 0, s%d' % (sDSLOT, sDSLOT))
    dma()
    a('s_cmp_lt_u32 s%d, 2' % sN)
    a('s_cbranch_scc1 L_no2')
    dma()
    a.label('L_no2')
    a('s_lshl_b32 s%d, s%d, 3' % (sTMP, sW))
    a('v_add_u32 v%d, s%d, v%d' % (vMASK, sTMP, vMASK))
    for r in range(64): a('v_mov_b32 v%d, 0' % (O + r))
    a('v_mov_b32 v%d, 0xff800000' % vM)
    a('v_mov_b32 v%d, 0' % vL)
    a('s_mov_b32 s%d, 0' % sT)
    a('s_mov_b32 s%d, 0' % sSLOT)
    FINE = opts.get('fine', False)
    fcount = [0]
    def fine(k):
        if FINE:
            lab = 'L_f%d' % k
            a('s_cmp_lg_u32 s%d, 6' % sT)
            a('s_cbranch_scc1 %s' % lab)
            a('s_memtime s[%d:%d]' % (64 + 2 * k, 65 + 2 * k))
            a.label(lab)
    a.label('L_loop')
    fine(0)
    a('s_add_u32 s%d, s%d, 1' % (sTMP, sT))
    a('s_cmp_lt_u32 s%d, s%d' % (sTMP, sN))
    a('s_cbranch_scc1 L_w4')
    a('s_waitcnt vmcnt(0)')
    a('s_branch L_w0')
    a.label('L_w4')
    a('s_waitcnt vmcnt(4)')
    a.label('L_w0')
    a('s_barrier')
    if STAMP:
        a('s_cmp_lg_u32 s%d, 0' % sT)
        a('s_cbranch_scc1 L_nostamp')
        stamp(2)
        a.label('L_nostamp')
    fine(1)
    a('s_add_u32 s%d, s%d, 2' % (sTMP, sT))
    a('s_cmp_lt_u32 s%d, s%d' % (sTMP, sN))
    a('s_cbranch_scc0 L_nodma')
    dma()
    a.label('L_nodma')
    fine(2)
    for s in range(8):
        a('ds_read_b128 %s, v%d offset:%d' % (vr(F + 4 * s, 4), vKRD, 32 * s))
    for s in range(8):
        a('s_waitcnt lgkmcnt(%d)' % (7 - s))
        a('v_mfma_f32_32x32x16_bf16 %s, %s, %s, %s' % (vr(S, 16), vr(F + 4 * s, 4), vr(Q + 4 * s, 4), '0' if s == 0 else vr(S, 16)))
    fine(3)
    for s in range(2):
        for b in range(4):
            for jj in range(2):
                k = (s * 4 + b) * 4 + jj * 2
                a('ds_read_b64_tr_b16 %s, v%d offset:%d' % (vr(F + k, 2), vVRD, s * 4 * VPAD + jj * 512 + b * 64))
    a('s_cmp_lg_u32 s%d, 0' % sT)
    a('s_cbranch_scc1 L_nomask')
    a('v_mov_b32 v%d, 0xff800000' % vT0)
    for r in range(16):
        kc = (r & 3) + 8 * (r >> 2)
        a('v_cmp_gt_i32 vcc, %d, v%d' % (kc, vMASK))
        a('v_cndmask_b32 v%d, v%d, v%d, vcc' % (S + r, S + r, vT0))
    a.label('L_nomask')
    a('v_max3_f32 v%d, v%d, v%d, v%d' % (vT0, S, S + 1, S + 2))
    for r in range(3, 15, 2):
        a('v_max3_f32 v%d, v%d, v%d, v%d' % (vT0, vT0, S + r, S + r + 1))
    a('v_max3_f32 v%d, v%d, v%d, v%d' % (vT0, vT0, S + 15, vM))
    a('v_mov_b32 v%d, v%d' % (vT1, vT0))
    a('v_permlane32_swap_b32 v%d, v%d' % (vT1, vT0))
    a('v_max_f32 v%d, v%d, v%d' % (vT0, vT0, vT1))
    a('v_sub_f32 v%d, v%d, v%d' % (vT1, vM, vT0))
    a('v_mul_f32 v%d, s%d, v%d' % (vT1, sC, vT1))
    a('v_exp_f32 v%d, v%d' % (vALPHA, vT1))
    a('v_mov_b32 v%d, v%d' % (vM, vT0))
    a('v_mul_f32 v%d, s%d, v%d' % (vNMC, sC, vT0))
    for r in range(16):
        a('v_fma_f32 v%d, v%d, s%d, -v%d' % (S + r, S + r, sC, vNMC))
    for r in range(16):
        a('v_exp_f32 v%d, v%d' % (S + r, S + r))
    for r in range(64):
        a('v_mul_f32 v%d, v%d, v%d' % (O + r, vALPHA, O + r))
    a('v_mul_f32 v%d, v%d, v%d' % (vL, vALPHA, vL))
    for r in range(16):
        a('v_add_f32 v%d, v%d, v%d' % (vL, vL, S + r))
    for r in range(8):
        a('v_cvt_pk_bf16_f32 v%d, v%d, v%d' % (P + r, S + 2 * r, S + 2 * r + 1))
    fine(4)
    a('s_waitcnt lgkmcnt(0)')
    for s in range(2):
        for b in range(4):
            k = (s * 4 + b) * 4
            a('v_mfma_f32_32x32x16_bf16 %s, %s, %s, %s' % (vr(O + 16 * b, 16), vr(F + k, 4), vr(P + 4 * s, 4), vr(O + 16 * b, 16)))
    fine(5)
    a('s_add_u32 s%d, s%d, %d' % (sSLOT, sSLOT, SLOT))
    a('s_cmp_eq_u32 s%d, %d' % (sSLOT, NSLOT * SLOT))
    a('s_mov_b32 s%d, %d' % (sRDELTA, SLOT))
    a('s_cselect_b32 s%d, 0x%x, s%d' % (sRDELTA, (-(NSLOT - 1) * SLOT) & 0xffffffff, sRDELTA))
    a('s_cselect_b32 s%d, 0, s%d' % (sSLOT, sSLOT))
    a('v_add_u32 v%d, s%d, v%d' % (vKRD, sRDELTA, vKRD))
    a('v_add_u32 v%d, s%d, v%d' % (vVRD, sRDELTA, vVRD))
    a('s_add_u32 s%d, s%d, 1' % (sT, sT))
    a('s_cmp_lt_u32 s%d, s%d' % (sT, sN))
    a('s_cbranch_scc1 L_loop')
    stamp(3)
    a('v_mov_b32 v%d, v%d' % (vT1, vL))
    a('v_permlane32_swap_b32 v%d, v%d' % (vT1, vL))
    a('v_add_f32 v%d, v%d, v%d' % (vL, vL, vT1))
    a('v_rcp_f32 v%d, v%d' % (vL, vL))
    a('v_bfe_u32 v%d, v%d, 2, 3' % (vT0, vTID))
    a('s_lshl_b32 s%d, s%d, 3' % (sTMP, sW))
    a('v_add_u32 v%d, s%d, v%d' % (vT0, sTMP, vT0))
    a('v_cmp_gt_u32 vcc, s%d, v%d' % (sNV, vT0))
    for r in range(64):
        a('v_mul_f32 v%d, v%d, v%d' % (O + r, vL, O + r))
    PK = S
    a('s_and_saveexec_b64 s[%d:%d], vcc' % (sEX, sEX + 1))
    a('s_cbranch_execz %s' % ('L_fin' if STAMP else 'L_spin0' if SPIN else 'L_end'))
    a('s_mov_b64 exec, s[%d:%d]' % (sEX, sEX + 1))
    for b in range(4):
        for tp in range(2):
            base = Q + (b * 2 + tp) * 4
            o0 = O + 16 * b + 8 * tp
            a('v_cvt_pk_bf16_f32 v%d, v%d, v%d' % (base + 0, o0 + 0, o0 + 1))
            a('v_cvt_pk_bf16_f32 v%d, v%d, v%d' % (base + 1, o0 + 2, o0 + 3))
            a('v_cvt_pk_bf16_f32 v%d, v%d, v%d' % (base + 2, o0 + 4, o0 + 5))
            a('v_cvt_pk_bf16_f32 v%d, v%d, v%d' % (base + 3, o0 + 6, o0 + 7))
    for b in range(4):
        for tp in range(2):
            base = Q + (b * 2 + tp) * 4
            a('v_permlane32_swap_b32 v%d, v%d' % (base + 0, base + 2))
            a('v_permlane32_swap_b32 v%d, v%d' % (base + 1, base + 3))
    a('s_and_b64 exec, exec, vcc')
    for b in range(4):
        for tp in range(2):
            base = Q + (b * 2 + tp) * 4
            a('buffer_store_dwordx4 %s, v%d, s[%d:%d], s%d offen offset:%d%s' % (vr(base, 4), vOOFF, sO, sO + 3, sQOFF, 64 * b + 32 * tp, STF))
    if STAMP:
        a.label('L_fin')
        a('s_waitcnt vmcnt(0)')
        stamp(4); stamp(5, True)
        a('s_getreg_b32 s58, hwreg(HW_REG_HW_ID)')
        a('s_getreg_b32 s59, hwreg(HW_REG_XCC_ID)')
        a('s_load_dwordx2 s[60:61], s[0:1], 48')
        a('s_waitcnt lgkmcnt(0)')
        a('s_mov_b32 s62, 0x1000000')
        a('s_mov_b32 s63, 0x20000')
        a('s_mov_b64 exec, 1')
        a('s_lshl_b32 s%d, s2, 2' % sTMP)
        a('s_add_u32 s%d, s%d, s%d' % (sTMP, sTMP, sW))
        a('s_lshl_b32 s%d, s%d, 7' % (sTMP, sTMP))
        a('v_mov_b32 v1, s%d' % sTMP)
        for k in range(16):
            a('v_mov_b32 v%d, s%d' % (4 + k, sST + k))
        a('v_mov_b32 v20, s%d' % sE)
        if FINE:
            for k in range(12): a('v_mov_b32 v%d, s%d' % (24 + k, 64 + k))
            for k in range(3): a('buffer_store_dwordx4 v[%d:%d], v1, s[60:63], 0 offen offset:%d' % (24 + 4 * k, 27 + 4 * k, 80 + 16 * k))
        for k in range(4):
            a('buffer_store_dwordx4 v[%d:%d], v1, s[60:63], 0 offen offset:%d' % (4 + 4 * k, 7 + 4 * k, 16 * k))
        a('buffer_store_dword v20, v1, s[60:63], 0 offen offset:64')
    if SPIN:
        a.label('L_spin0')
        a('s_mov_b64 exec, -1')
        a('s_waitcnt vmcnt(0) lgkmcnt(0)')
        a.label('L_spin')
        a('s_memrealtime s[72:73]')
        a('s_waitcnt lgkmcnt(0)')
        a('s_sub_u32 s72, s72, s70')
        a('s_cmp_lt_u32 s72, 5000')
        a('s_cbranch_scc0 L_end')
        a('s_sleep 4')
        a('s_branch L_spin')
    a.label('L_end')
    a('s_endpgm')
    n = a.fix_hazards(verbose=opts.get('verbose', False))
    body = a.text()
    tabtxt = '.p2align 6\n.type L_table,@object\nL_table:\n' + ''.join('.long 0x%08x\n' % x for x in tab) + '.size L_table, %d\n' % (4 * len(tab))
    lds = NSLOT * SLOT
    hdr = HEADER.replace('@LAUNCH@', '; @launch grid=(%d,1,1) block=(256,1,1) lds=%d' % (NWG, lds))
    out = hdr + '.amdgcn_target "amdgcn-amd-amdhsa--gfx950"\n.text\n.globl %s_kernel\n.p2align 8\n.type %s_kernel,@function\n%s_kernel:\n' % (NAME, NAME, NAME)
    out += body + tabtxt
    out += '''.section .rodata,"a"
.p2align 6
.amdhsa_kernel %s_kernel
  .amdhsa_next_free_vgpr %d
  .amdhsa_next_free_sgpr 80
  .amdhsa_accum_offset %d
  .amdhsa_group_segment_fixed_size 0
  .amdhsa_kernarg_size 56
  .amdhsa_user_sgpr_count 2
  .amdhsa_user_sgpr_kernarg_segment_ptr 1
  .amdhsa_system_sgpr_workgroup_id_x 1
.end_amdhsa_kernel
''' % (NAME, NV, NV)
    return out

if __name__ == '__main__':
    opts = {k: True for k in sys.argv[2:]}
    out = gen(opts)
    path = sys.argv[1] if len(sys.argv) > 1 else 'cdna_kernels/%s.s' % NAME
    open(path, 'w').write(out)
    print('wrote', path, len(out))
```
